```python
import torch

def _softmax(x, axis=-1):
    return torch.softmax(x, dim=axis)
def _gelu(x):
    return torch.nn.functional.gelu(x, approximate="tanh")
def _silu(x):
    return torch.nn.functional.silu(x)
def _sigmoid(x):
    return torch.sigmoid(x)
def _layernorm(x, axis=-1, eps=1e-5):
    m = x.mean(dim=axis, keepdim=True)
    v = x.var(dim=axis, keepdim=True, unbiased=False)
    return (x - m) / torch.sqrt(v + eps)
def _scatter_add(tgt, idx, src, axis=0):
    return tgt.clone().index_add_(axis, idx, src)
def _segment_sum(src, seg, n):
    out = torch.zeros((n,) + src.shape[1:], dtype=src.dtype)
    return out.index_add_(0, seg, src)
def _pad(x, pw):
    flat = tuple(v for pair in reversed(pw) for v in pair)
    return torch.nn.functional.pad(x, flat)

kernel_name = 'parallel_sum__mha_block_cached__geglu_ffn__decode'

def setup_inputs():

    _w = (lambda a: (lambda t: t.to(torch.bfloat16) if t.is_floating_point() else t)(torch.as_tensor(a)))
    def _A_setup():
        B, Sq, D = 1, 1, 576
        H, Sk, Dh = 32, 16384, 128
        return {
            "x": _w((lambda *s: torch.randn(*s, dtype=torch.bfloat16) * 0.05)(B, Sq, D)),
            "k_cache": _w((lambda *s: torch.randn(*s, dtype=torch.bfloat16) * 3.2)(B, H, Sk, Dh)),
            "v_cache": _w((lambda *s: torch.randn(*s, dtype=torch.bfloat16) * 1.6)(B, H, Sk, Dh)),
            "wq": _w((lambda *s: torch.randn(*s, dtype=torch.bfloat16) * 3.2)(D, H * Dh) * (D ** -0.5)),
            "wo": _w((lambda *s: torch.randn(*s, dtype=torch.bfloat16) * 1.6)(H * Dh, D) * ((H * Dh) ** -0.5)),
        }
    _A_in = _A_setup()

    def _B_setup():
        B, S, D, F = 1, 1, 576, 4608
        return {
            "x": _w((lambda *s: torch.randn(*s, dtype=torch.bfloat16) * 0.05)(B, S, D)),
            "w_gate": _w((lambda *s: torch.randn(*s, dtype=torch.bfloat16) * 0.05)(D, F)),
            "w_up": _w((lambda *s: torch.randn(*s, dtype=torch.bfloat16) * 0.05)(D, F)),
            "w_down": _w((lambda *s: torch.randn(*s, dtype=torch.bfloat16) * 0.05)(F, D)),
        }
    _B_in = _B_setup()

    return {
        "A_x": _A_in["x"],
        "A_k_cache": _A_in["k_cache"],
        "A_v_cache": _A_in["v_cache"],
        "A_wq": _A_in["wq"],
        "A_wo": _A_in["wo"],
        "B_x": _B_in["x"],
        "B_w_gate": _B_in["w_gate"],
        "B_w_up": _B_in["w_up"],
        "B_w_down": _B_in["w_down"],
    }

def reference(A_x, A_k_cache, A_v_cache, A_wq, A_wo, B_x, B_w_gate, B_w_up, B_w_down):
    def _A_ref(x, k_cache, v_cache, wq, wo):
        B, Sq, D = x.shape
        H, Dh = 32, 128
        q = (lambda x, *d: x.permute(*d))((x @ wq).reshape(B, Sq, H, Dh), 0, 2, 1, 3)
        scores = torch.einsum("bhqd,bhkd->bhqk", q, k_cache) * (Dh ** -0.5)
        p = _softmax(scores, axis=-1)
        o = torch.einsum("bhqk,bhkd->bhqd", p, v_cache)
        return (lambda x, *d: x.permute(*d))(o, 0, 2, 1, 3).reshape(B, Sq, H * Dh) @ wo

    def _B_ref(x, w_gate, w_up, w_down):
        return (_gelu(x @ w_gate) * (x @ w_up)) @ w_down

    x = A_x
    xn = _layernorm(x, axis=-1)
    return x + _A_ref(xn, A_k_cache, A_v_cache, A_wq, A_wo) + _B_ref(xn, B_w_gate, B_w_up, B_w_down)
```

```python
import re

TRANS = ("v_exp_f32", "v_log_f32", "v_rcp_f32", "v_rsq_f32", "v_sqrt_f32", "v_sin_f32", "v_cos_f32")
_REG = re.compile(r"^(v|s|a)(\d+)$")
_RNG = re.compile(r"^(v|s|a)\[(\d+):(\d+)\]$")


def regs_of(tok):
    tok = tok.strip()
    neg = tok.lstrip("-")
    m = re.match(r"^abs\((.*)\)$", neg)
    if m:
        neg = m.group(1)
    m = _REG.match(neg)
    if m:
        return [(m.group(1), int(m.group(2)))]
    m = _RNG.match(neg)
    if m:
        return [(m.group(1), i) for i in range(int(m.group(2)), int(m.group(3)) + 1)]
    if neg in ("vcc", "vcc_lo", "vcc_hi"):
        return [("vcc", 0)]
    if neg in ("exec", "exec_lo", "exec_hi"):
        return [("exec", 0)]
    if neg == "m0":
        return [("m0", 0)]
    return []


def split_ops(s):
    out, depth, cur = [], 0, ""
    for ch in s:
        if ch in "[(":
            depth += 1
        if ch in "])":
            depth -= 1
        if ch == "," and depth == 0:
            out.append(cur.strip())
            cur = ""
        else:
            cur += ch
    if cur.strip():
        out.append(cur.strip())
    return out


class Ins:
    __slots__ = ("text", "mn", "kind", "wr", "rd", "trans", "dot", "dpp", "perm", "rdlane", "widestore", "states", "srcc")


def parse(text):
    t = text.split(";")[0].strip()
    parts = t.split(None, 1)
    mn = parts[0]
    rest = parts[1] if len(parts) > 1 else ""
    I = Ins()
    I.text = text
    I.mn = mn
    I.trans = mn.replace("_e32", "").replace("_e64", "") in TRANS
    I.dot = mn.startswith("v_dot2")
    I.dpp = ("_dpp" in mn) or ("row_" in rest) or ("quad_perm" in rest)
    I.perm = mn.startswith("v_permlane")
    I.rdlane = mn.startswith("v_readlane") or mn.startswith("v_readfirstlane")
    I.widestore = False
    I.states = 1
    I.srcc = []
    ops = split_ops(rest)
    if ops:
        last = ops[-1].split()
        ops[-1] = last[0] if last else ""
    I.wr, I.rd = [], []
    if mn == "s_nop":
        I.kind = "nop"
        I.states = int(ops[0], 0) + 1
        return I
    if mn.startswith("v_"):
        I.kind = "valu"
        if I.perm:
            I.wr = regs_of(ops[0]) + regs_of(ops[1])
            I.rd = list(I.wr)
        else:
            I.wr = regs_of(ops[0])
            k = 1
            if mn.startswith("v_add_co") or mn.startswith("v_addc_co") or mn.startswith("v_sub_co") or mn.startswith("v_div_scale"):
                I.wr += regs_of(ops[1])
                k = 2
            for o in ops[k:]:
                I.rd += regs_of(o)
            if mn.startswith("v_fmac") or mn.startswith("v_dot2c") or mn.startswith("v_pk_fmac") or mn.startswith("v_writelane"):
                I.rd += regs_of(ops[0])
                I.srcc = regs_of(ops[0])
            if mn.startswith("v_dot2_") and len(ops) >= 4:
                I.srcc = regs_of(ops[3])
            if mn.startswith("v_cndmask") and len(ops) == 3:
                I.rd += [("vcc", 0)]
        return I
    if mn.startswith("buffer_") or mn.startswith("global_"):
        I.kind = "vmem"
        if "store" in mn:
            for o in ops:
                I.rd += regs_of(o)
            I.widestore = ("x4" in mn) or ("x3" in mn)
            I.srcc = regs_of(ops[0]) if mn.startswith("buffer_") else regs_of(ops[1])
        elif "atomic" in mn:
            for o in ops:
                I.rd += regs_of(o)
            if "sc0" in rest:
                I.wr = regs_of(ops[0])
        else:
            I.wr = regs_of(ops[0])
            for o in ops[1:]:
                I.rd += regs_of(o)
        return I
    if mn.startswith("ds_"):
        I.kind = "ds"
        if "write" in mn or "add" in mn:
            for o in ops:
                I.rd += regs_of(o)
        else:
            I.wr = regs_of(ops[0])
            for o in ops[1:]:
                I.rd += regs_of(o)
        return I
    I.kind = "salu"
    if mn.startswith("s_load") or mn.startswith("s_mov") or mn.startswith("s_add") or mn.startswith("s_lshl") or mn.startswith("s_mul") \
            or mn.startswith("s_and") or mn.startswith("s_or") or mn.startswith("s_lshr") or mn.startswith("s_cselect") or mn.startswith("s_sub") \
            or mn.startswith("s_getreg") or mn.startswith("s_bfe"):
        I.wr = regs_of(ops[0])
        for o in ops[1:]:
            I.rd += regs_of(o)
    else:
        for o in ops:
            I.rd += regs_of(o)
    return I


class Asm:
    def __init__(self):
        self.lines = []
        self.hist = []
        self.vm_issued = 0
        self.tags = {}
        self.nops_inserted = 0

    def raw(self, text):
        self.lines.append(text)

    def label(self, name):
        self.lines.append(name + ":")
        self.flush_hazards()

    def flush_hazards(self):
        self.lines.append("    s_nop 4")
        self.hist.append(parse("s_nop 4"))

    def comment(self, t):
        self.lines.append("    ; " + t)

    def _need(self, I):
        need = 0
        dist = 0
        for P in reversed(self.hist[-12:]):
            req = 0
            pw = set(P.wr)
            if P.kind == "valu":
                vw = {r for r in pw if r[0] == "v"}
                sw = {r for r in pw if r[0] in ("s", "vcc")}
                rdset = set(I.rd)
                wrset = set(I.wr)
                if I.kind == "valu":
                    if I.dpp and vw & rdset:
                        req = max(req, 2)
                    if I.perm and vw & rdset:
                        req = max(req, 2)
                    if P.trans and not I.trans and vw & rdset:
                        req = max(req, 1)
                    if P.trans and I.trans and vw & rdset:
                        req = max(req, 1)
                    if P.dot:
                        if I.mn != P.mn:
                            if vw & (rdset | wrset):
                                req = max(req, 3)
                        else:
                            ab = rdset - set(I.srcc)
                            if vw & ab:
                                req = max(req, 3)
                    if sw & rdset:
                        req = max(req, 4 if I.rdlane else 2)
                    if I.rdlane and vw & rdset:
                        req = max(req, 1)
                    if ("exec", 0) in pw:
                        req = max(req, 5)
                elif I.kind in ("vmem",):
                    if sw & rdset:
                        req = max(req, 5)
                    if P.dot and vw & rdset:
                        req = max(req, 3)
                    if P.trans and vw & rdset:
                        req = max(req, 1)
                elif I.kind == "ds":
                    if P.dot and vw & rdset:
                        req = max(req, 3)
                    if P.trans and vw & rdset:
                        req = max(req, 1)
                elif I.kind == "salu":
                    if sw & rdset:
                        req = max(req, 4)
            if P.kind == "vmem" and P.widestore:
                if set(P.srcc) & set(I.wr):
                    req = max(req, 2)
            if req > dist:
                need = max(need, req - dist)
            dist += P.states
            if dist >= 6:
                break
        return need

    def __call__(self, text):
        for line in text.strip().split("\n"):
            line = line.strip()
            if not line:
                continue
            if line.startswith(";"):
                self.lines.append("    " + line)
                continue
            I = parse(line)
            n = self._need(I)
            if n > 0:
                self.lines.append("    s_nop %d" % (n - 1))
                self.hist.append(parse("s_nop %d" % (n - 1)))
                self.nops_inserted += n
            self.lines.append("    " + line)
            self.hist.append(I)
            if I.kind == "vmem":
                self.vm_issued += 1
            if I.mn.startswith("s_cbranch") or I.mn == "s_branch":
                pass

    def tag(self, name):
        self.tags[name] = self.vm_issued

    def wait_vm(self, name):
        n = self.vm_issued - self.tags[name]
        n = min(n, 63)
        self("s_waitcnt vmcnt(%d)" % n)

    def text(self):
        return "\n".join(self.lines) + "\n"
```

```python
import sys
sys.path.insert(0, "work")
from asmlib import Asm

NAME = "parallel_sum__mha_block_cached__geglu_ffn__decode"
K1 = NAME + "_kernel"
K2 = "psum_final_kernel"

KVFLAGS = " nt" if "--nt" in sys.argv else ""

L_QP = 0
L_FP = 8192
L_QF = 12288
L_HF = 12544
L_MW = 12800
L_LW = 12864
L_AP = 13056
AP_STRIDE = 528
L_YP = 21504
L_FY = L_YP + 16 * 2304
L_TOTAL = L_FY + 9 * 2304

WS_ML = 36 * 512 * 64

LOG2E = 0x3FB8AA3B
SCALE = 0x3DB504F3


def f32hex(x):
    import struct
    return "0x%08x" % struct.unpack("<I", struct.pack("<f", x))[0]


def allreduce(a, op, v, t):
    for r in (8, 4, 2, 1):
        a(f"{op}_dpp v{v}, v{v}, v{v} row_ror:{r} row_mask:0xf bank_mask:0xf")
    xgroup(a, op, v, t)


def xgroup(a, op, v, t):
    a(f"v_mov_b32 v{t}, v{v}")
    a(f"v_permlane32_swap_b32 v{v}, v{t}")
    a(f"{op} v{v}, v{v}, v{t}")
    a(f"v_mov_b32 v{t}, v{v}")
    a(f"v_permlane16_swap_b32 v{v}, v{t}")
    a(f"{op} v{v}, v{v}, v{t}")


def rscatter4(a, r):
    a(f"v_permlane32_swap_b32 v{r[0]}, v{r[1]}")
    a(f"v_permlane32_swap_b32 v{r[2]}, v{r[3]}")
    a(f"v_add_f32 v{r[0]}, v{r[0]}, v{r[1]}")
    a(f"v_add_f32 v{r[2]}, v{r[2]}, v{r[3]}")
    a(f"v_permlane16_swap_b32 v{r[0]}, v{r[2]}")
    a(f"v_add_f32 v{r[0]}, v{r[0]}, v{r[2]}")


def bf16r(a, v):
    a(f"v_cvt_pk_bf16_f32 v{v}, v{v}, v{v}")
    a(f"v_lshlrev_b32 v{v}, 16, v{v}")


def srd(a, d, p, nbytes):
    a(f"s_mov_b32 s{d}, s{p}")
    a(f"s_and_b32 s{d+1}, s{p+1}, 0xffff")
    a(f"s_mov_b32 s{d+2}, {nbytes}")
    a(f"s_mov_b32 s{d+3}, 0x00020000")


def gen_k1(a):
    S = 16
    WIN = 48
    ACC = 112
    Q = 120
    GATE, UP, XR = 16, 25, 34
    XS = [43, 44, 45, 46, 47, 120, 121, 122, 123]
    GA = [124, 125, 126, 127]

    def slot(n):
        return WIN + 4 * ((n + 9) % 16)

    a.raw(f".globl {K1}\n.p2align 8\n.type {K1},@function\n{K1}:")
    a("s_cmp_ge_u32 s2, 256")
    a("s_cbranch_scc1 L_k1_end")
    a("s_load_dwordx16 s[4:19], s[0:1], 0")
    a("s_load_dwordx8 s[20:27], s[0:1], 64")
    a("v_and_b32 v2, 63, v0")
    a("v_lshlrev_b32 v1, 4, v2")
    a("v_lshrrev_b32 v3, 4, v2")
    a("v_and_b32 v4, 15, v2")
    a("v_lshrrev_b32 v5, 6, v0")
    a("v_readfirstlane_b32 s64, v5")
    a("s_and_b32 s65, s2, 7")
    a("s_lshl_b32 s65, s65, 5")
    a("s_lshr_b32 s66, s2, 3")
    a("s_add_u32 s65, s65, s66")
    a("s_lshr_b32 s66, s65, 3")
    a("s_and_b32 s67, s65, 7")
    a("v_lshlrev_b32 v5, 13, v3")
    a("v_lshl_add_u32 v5, v4, 4, v5")
    a("v_mul_u32_u24 v6, 9216, v3")
    a("v_lshl_add_u32 v6, v4, 2, v6")
    a("v_lshlrev_b32 v7, 1, v3")
    a("v_lshlrev_b32 v8, 1, v2")
    a("s_mul_i32 s68, s64, 36")
    a("s_lshl_b32 s69, s68, 1")
    a("s_lshl_b32 s70, s68, 13")
    a("s_lshl_b32 s71, s66, 8")
    a("s_add_u32 s70, s70, s71")
    a("s_mul_i32 s71, s68, 9216")
    a("s_mul_i32 s72, s65, 36")
    a("s_add_u32 s71, s71, s72")
    a("s_lshl_b32 s72, s65, 19")
    a("s_lshl_b32 s73, s64, 15")
    a("s_add_u32 s80, s72, s73")
    for t in range(1, 8):
        a(f"s_add_u32 s{80+t}, s80, {4096*t}")
    a("s_waitcnt lgkmcnt(0)")
    srd(a, 28, 4, 1152)
    srd(a, 32, 6, 134217728)
    srd(a, 36, 8, 134217728)
    srd(a, 40, 10, 576 * 4096 * 2)
    srd(a, 44, 12, 4096 * 576 * 2)
    srd(a, 48, 16, 576 * 4608 * 2)
    srd(a, 52, 18, 576 * 4608 * 2)
    srd(a, 56, 20, 4608 * 576 * 2)
    srd(a, 60, 26, WS_ML + 256 * 8)
    for k in range(9):
        a(f"buffer_load_ushort v{XS[k]}, v8, s[28:31], 0 offen offset:{128*k}")
    a.tag("xs")
    for j in range(9):
        a(f"buffer_load_ushort v{XR+j}, v7, s[28:31], s69 offen offset:{8*j}")
    a.tag("xr")
    for j in range(9):
        a(f"buffer_load_dwordx4 v[{WIN+4*j}:{WIN+4*j+3}], v5, s[40:43], s70 offen")
        a.tag(f"wq{j}")
        if j < 8:
            a("s_add_u32 s70, s70, 32768")
    for j in range(9):
        a(f"buffer_load_dword v{GATE+j}, v6, s[48:51], s71 offen")
        a(f"buffer_load_dword v{UP+j}, v6, s[52:55], s71 offen")
        if j < 8:
            a("s_add_u32 s71, s71, 36864")
    a.tag("gu")

    def kvload(n):
        buf = "s[32:35]" if n < 32 else "s[36:39]"
        m = n % 32
        r = slot(n)
        a(f"buffer_load_dwordx4 v[{r}:{r+3}], v1, {buf}, s{80 + m // 4} offen offset:{1024 * (m % 4)}{KVFLAGS}")
        a.tag(f"kv{n}")

    for n in range(7):
        kvload(n)
    a.wait_vm("xs")
    for k in range(9):
        a(f"v_lshlrev_b32 v{XS[k]}, 16, v{XS[k]}")
    a(f"v_add_f32 v9, v{XS[0]}, v{XS[1]}")
    for k in range(2, 9):
        a(f"v_add_f32 v9, v9, v{XS[k]}")
    allreduce(a, "v_add_f32", 9, 10)
    a(f"v_mul_f32 v9, {f32hex(1.0/576)}, v9")
    a(f"v_sub_f32 v11, v{XS[0]}, v9")
    a("v_mul_f32 v10, v11, v11")
    for k in range(1, 9):
        a(f"v_sub_f32 v11, v{XS[k]}, v9")
        a("v_fmac_f32 v10, v11, v11")
    allreduce(a, "v_add_f32", 10, 11)
    a(f"v_mul_f32 v10, {f32hex(1.0/576)}, v10")
    bf16r(a, 9)
    bf16r(a, 10)
    a(f"v_add_f32 v10, {f32hex(1e-5)}, v10")
    bf16r(a, 10)
    a("v_sqrt_f32 v10, v10")
    bf16r(a, 10)
    a("v_rcp_f32 v11, v10")
    a.wait_vm("xr")
    for j in range(9):
        x = XR + j
        a(f"v_lshlrev_b32 v{x}, 16, v{x}")
        a(f"v_sub_f32 v{x}, v{x}, v9")
        bf16r(a, x)
        a(f"v_mul_f32 v12, v{x}, v11")
        a(f"v_fma_f32 v13, -v12, v10, v{x}")
        a(f"v_fma_f32 v{x}, v13, v11, v12")
        bf16r(a, x)
    for i in range(8):
        a(f"v_mov_b32 v{ACC+i}, 0")
    for i in range(4):
        a(f"v_mov_b32 v{GA[i]}, 0")
    for j in range(9):
        a.wait_vm(f"wq{j}")
        for i in range(4):
            w = WIN + 4 * j + i
            a(f"v_lshlrev_b32 v{5+2*i}, 16, v{w}")
            a(f"v_and_b32 v{6+2*i}, 0xffff0000, v{w}")
        for i in range(8):
            a(f"v_fmac_f32 v{ACC+i}, v{XR+j}, v{5+i}")
    for n in range(7, 16):
        kvload(n)
    WD = 36
    a("s_mul_i32 s72, s65, 18")
    a("s_lshl_b32 s73, s64, 1")
    a("s_add_u32 s72, s72, s73")
    a("s_mul_i32 s72, s72, 1152")
    a("s_cmp_lt_u32 s64, 9")
    a("s_cselect_b32 s72, s72, 0x7f000000")
    a("v_lshrrev_b32 v13, 3, v2")
    a("v_mul_u32_u24 v13, 1152, v13")
    a("v_and_b32 v14, 7, v2")
    a("v_lshl_add_u32 v13, v14, 4, v13")
    a("v_add_u32 v13, 1024, v13")
    a.wait_vm("gu")
    for j in range(9):
        a(f"v_lshlrev_b32 v5, 16, v{GATE+j}")
        a(f"v_and_b32 v6, 0xffff0000, v{GATE+j}")
        a(f"v_lshlrev_b32 v7, 16, v{UP+j}")
        a(f"v_and_b32 v8, 0xffff0000, v{UP+j}")
        for i in range(4):
            a(f"v_fmac_f32 v{GA[i]}, v{XR+j}, v{5+i}")
    a(f"buffer_load_dwordx4 v[{WD}:{WD+3}], v1, s[56:59], s72 offen")
    a(f"buffer_load_dwordx4 v[{WD+4}:{WD+7}], v1, s[56:59], s72 offen offset:1152")
    a(f"buffer_load_dwordx4 v[{WD+8}:{WD+11}], v13, s[56:59], s72 offen")
    a.tag("wd")
    rscatter4(a, [ACC, ACC + 1, ACC + 2, ACC + 3])
    rscatter4(a, [ACC + 4, ACC + 5, ACC + 6, ACC + 7])
    rscatter4(a, GA)
    a("v_and_b32 v5, 1, v3")
    a("v_lshlrev_b32 v5, 1, v5")
    a("v_lshrrev_b32 v6, 1, v3")
    a("v_or_b32 v15, v5, v6")
    a("v_lshl_add_u32 v5, v4, 3, v15")
    a("v_lshlrev_b32 v5, 2, v5")
    a("s_lshl_b32 s73, s64, 9")
    a("v_add_u32 v5, s73, v5")
    a(f"ds_write_b32 v5, v{ACC} offset:{L_QP}")
    a(f"ds_write_b32 v5, v{ACC+4} offset:{L_QP+16}")
    a("v_lshl_add_u32 v6, v4, 2, v15")
    a("v_lshlrev_b32 v6, 2, v6")
    a("s_lshl_b32 s73, s64, 8")
    a("v_add_u32 v6, s73, v6")
    a(f"ds_write_b32 v6, v{GA[0]} offset:{L_FP}")
    a("s_waitcnt lgkmcnt(0)")
    a("s_barrier")
    a("s_cmp_ge_u32 s64, 3")
    a("s_cbranch_scc1 L_k1_s2done")
    a("s_cmp_eq_u32 s64, 2")
    a("s_cbranch_scc1 L_k1_s2ffn")
    a("v_lshlrev_b32 v5, 2, v0")
    for w in range(16):
        a(f"ds_read_b32 v{16+w}, v5 offset:{L_QP + 512*w}")
    a("s_waitcnt lgkmcnt(0)")
    a("v_add_f32 v6, v16, v17")
    for w in range(2, 16):
        a(f"v_add_f32 v6, v6, v{16+w}")
    a("v_cvt_pk_bf16_f32 v6, v6, v6")
    a("v_lshlrev_b32 v5, 1, v0")
    a(f"ds_write_b16 v5, v6 offset:{L_QF}")
    a("s_branch L_k1_s2done")
    a.label("L_k1_s2ffn")
    a("v_lshrrev_b32 v5, 1, v2")
    a("v_lshlrev_b32 v5, 2, v5")
    a("v_and_b32 v6, 1, v2")
    a("v_add_u32 v5, v5, v6")
    a("v_lshlrev_b32 v5, 2, v5")
    for w in range(16):
        a(f"ds_read_b32 v{16+w}, v5 offset:{L_FP + 256*w}")
    a("s_waitcnt lgkmcnt(0)")
    a("v_add_f32 v6, v16, v17")
    for w in range(2, 16):
        a(f"v_add_f32 v6, v6, v{16+w}")
    for w in range(16):
        a(f"ds_read_b32 v{16+w}, v5 offset:{L_FP + 256*w + 8}")
    a("s_waitcnt lgkmcnt(0)")
    a("v_add_f32 v7, v16, v17")
    for w in range(2, 16):
        a(f"v_add_f32 v7, v7, v{16+w}")
    bf16r(a, 6)
    bf16r(a, 7)
    a("v_mul_f32 v8, v6, v6")
    a("v_mul_f32 v8, v8, v6")
    a(f"v_mov_b32 v9, {f32hex(0.044715)}")
    a("v_fma_f32 v8, v8, v9, v6")
    c = -2.0 * 0.7978845608028654 * 1.4426950408889634
    a(f"v_mul_f32 v8, {f32hex(c)}, v8")
    a("v_exp_f32 v8, v8")
    a("v_add_f32 v8, 1.0, v8")
    a("v_rcp_f32 v8, v8")
    a("v_mul_f32 v8, v6, v8")
    bf16r(a, 8)
    a("v_mul_f32 v8, v8, v7")
    bf16r(a, 8)
    a("v_lshlrev_b32 v5, 2, v2")
    a(f"ds_write_b32 v5, v8 offset:{L_HF}")
    a.label("L_k1_s2done")
    a("s_waitcnt lgkmcnt(0)")
    a("s_barrier")
    a("v_lshlrev_b32 v5, 4, v4")
    a(f"ds_read_b128 v[{Q}:{Q+3}], v5 offset:{L_QF}")
    a("s_lshl_b32 s73, s64, 3")
    a("v_mov_b32 v6, s73")
    a(f"ds_read_b64 v[124:125], v6 offset:{L_HF}")
    a("s_waitcnt lgkmcnt(0)")

    def kgroup(k):
        ns = [4 * k + i for i in range(4)]
        a.wait_vm(f"kv{ns[-1]}")
        for r in range(4):
            for n in ns:
                src2 = "0" if r == 0 else f"v{S+n}"
                a(f"v_dot2_f32_bf16 v{S+n}, v{slot(n)+r}, v{Q+r}, {src2}")
        for n in ns:
            if n + 16 < 64:
                kvload(n + 16)
        for rr in (8, 4, 2, 1):
            for n in ns:
                a(f"v_add_f32_dpp v{S+n}, v{S+n}, v{S+n} row_ror:{rr} row_mask:0xf bank_mask:0xf")
        for p in (0, 2):
            n0, n1 = ns[p], ns[p + 1]
            a(f"v_cvt_pk_bf16_f32 v{5+p}, v{S+n0}, v{S+n1}")
        for p in (0, 2):
            n0, n1 = ns[p], ns[p + 1]
            a(f"v_lshlrev_b32 v{S+n0}, 16, v{5+p}")
            a(f"v_and_b32 v{S+n1}, 0xffff0000, v{5+p}")
        for n in ns:
            a(f"v_mul_f32 v{S+n}, 0x{SCALE:08x}, v{S+n}")
        for p in (0, 2):
            n0, n1 = ns[p], ns[p + 1]
            a(f"v_cvt_pk_bf16_f32 v{5+p}, v{S+n0}, v{S+n1}")
        for p in (0, 2):
            n0, n1 = ns[p], ns[p + 1]
            a(f"v_lshlrev_b32 v{S+n0}, 16, v{5+p}")
            a(f"v_and_b32 v{S+n1}, 0xffff0000, v{5+p}")

    for k in range(4):
        kgroup(k)
    a.wait_vm("wd")
    a("s_cmp_ge_u32 s64, 9")
    a("s_cbranch_scc1 L_k1_nodown")
    for i in range(4):
        a(f"v_lshlrev_b32 v5, 16, v{WD+i}")
        a(f"v_and_b32 v6, 0xffff0000, v{WD+i}")
        a(f"v_lshlrev_b32 v7, 16, v{WD+4+i}")
        a(f"v_and_b32 v8, 0xffff0000, v{WD+4+i}")
        a(f"v_mul_f32 v{ACC+2*i}, v124, v5")
        a(f"v_mul_f32 v{ACC+2*i+1}, v124, v6")
        a(f"v_fmac_f32 v{ACC+2*i}, v125, v7")
        a(f"v_fmac_f32 v{ACC+2*i+1}, v125, v8")
    a("s_mul_i32 s73, s64, 2304")
    a(f"s_add_u32 s73, s73, {L_FY}")
    a("v_lshlrev_b32 v9, 5, v2")
    a("v_add_u32 v9, s73, v9")
    a(f"ds_write_b128 v9, v[{ACC}:{ACC+3}]")
    a(f"ds_write_b128 v9, v[{ACC+4}:{ACC+7}] offset:16")
    a("v_cmp_gt_u32 vcc, 8, v2")
    a("v_cndmask_b32 v10, v125, v124, vcc")
    for i in range(4):
        a(f"v_lshlrev_b32 v5, 16, v{WD+8+i}")
        a(f"v_and_b32 v6, 0xffff0000, v{WD+8+i}")
        a(f"v_mul_f32 v{WD+2*i}, v10, v5")
        a(f"v_mul_f32 v{WD+2*i+1}, v10, v6")
    for i in range(8):
        a(f"v_add_f32_dpp v{WD+i}, v{WD+i}, v{WD+i} row_ror:8 row_mask:0xf bank_mask:0xf")
    a("s_mov_b64 exec, 0xff")
    a(f"ds_write_b128 v9, v[{WD}:{WD+3}] offset:2048")
    a(f"ds_write_b128 v9, v[{WD+4}:{WD+7}] offset:2064")
    a("s_mov_b64 exec, -1")
    a("s_waitcnt lgkmcnt(0)")
    a.label("L_k1_nodown")
    for k in range(4, 8):
        kgroup(k)
    a(f"v_max3_f32 v5, v{S}, v{S+1}, v{S+2}")
    for n in range(3, 31, 2):
        a(f"v_max3_f32 v5, v5, v{S+n}, v{S+n+1}")
    a(f"v_max_f32 v5, v5, v{S+31}")
    xgroup(a, "v_max_f32", 5, 6)
    a("s_lshl_b32 s73, s64, 2")
    a("v_mov_b32 v6, s73")
    a(f"ds_write_b32 v6, v5 offset:{L_MW}")
    a("s_waitcnt lgkmcnt(0)")
    a("s_barrier")
    a("v_mov_b32 v6, 0")
    a(f"ds_read_b128 v[{ACC}:{ACC+3}], v6 offset:{L_MW}")
    a(f"ds_read_b128 v[{ACC+4}:{ACC+7}], v6 offset:{L_MW+16}")
    a(f"ds_read_b128 v[124:127], v6 offset:{L_MW+32}")
    a(f"ds_read_b128 v[8:11], v6 offset:{L_MW+48}")
    a("s_waitcnt lgkmcnt(0)")
    a(f"v_max3_f32 v5, v{ACC}, v{ACC+1}, v{ACC+2}")
    a(f"v_max3_f32 v5, v5, v{ACC+3}, v{ACC+4}")
    a(f"v_max3_f32 v5, v5, v{ACC+5}, v{ACC+6}")
    a(f"v_max3_f32 v5, v5, v{ACC+7}, v124")
    a("v_max3_f32 v5, v5, v125, v126")
    a("v_max3_f32 v5, v5, v127, v8")
    a("v_max3_f32 v5, v5, v9, v10")
    a("v_max_f32 v14, v5, v11")
    a(f"v_mov_b32 v6, 0x{LOG2E:08x}")
    a("v_mov_b32 v124, 0")
    for n in range(32):
        a(f"v_sub_f32 v{S+n}, v{S+n}, v14")
        a(f"v_mul_f32 v{S+n}, v{S+n}, v6")
        a(f"v_exp_f32 v{S+n}, v{S+n}")
    for n in range(32):
        a(f"v_add_f32 v124, v124, v{S+n}")
    for i in range(8):
        a(f"v_mov_b32 v{ACC+i}, 0")
    a("s_lshl_b32 s74, s66, 7")
    a("s_lshl_b32 s75, s64, 3")
    a("s_add_u32 s74, s74, s75")
    a("s_mul_i32 s74, s74, 1152")
    wo_slot = {}
    for i in range(32):
        n = 32 + i
        a.wait_vm(f"kv{n}")
        r = slot(n)
        for q in range(4):
            a(f"v_lshlrev_b32 v{5+2*q}, 16, v{r+q}")
            a(f"v_and_b32 v{6+2*q}, 0xffff0000, v{r+q}")
        if n + 16 < 64:
            kvload(n + 16)
        else:
            k = i - 16
            if k < 8:
                a(f"buffer_load_dwordx4 v[{r}:{r+3}], v1, s[44:47], s74 offen")
                a("s_add_u32 s74, s74, 1152")
                wo_slot[k] = r
            elif k == 8:
                a("s_sub_u32 s74, s74, 9216")
                a(f"buffer_load_dwordx4 v[{r}:{r+3}], v13, s[44:47], s74 offen")
                wo_slot[k] = r
                a.tag("wo")
        for q in range(8):
            a(f"v_fmac_f32 v{ACC+q}, v{S+i}, v{5+q}")
    rscatter4(a, [ACC, ACC + 1, ACC + 2, ACC + 3])
    rscatter4(a, [ACC + 4, ACC + 5, ACC + 6, ACC + 7])
    xgroup(a, "v_add_f32", 124, 125)
    a("v_lshl_add_u32 v5, v4, 3, v15")
    a("v_lshlrev_b32 v5, 2, v5")
    a(f"s_mul_i32 s73, s64, {AP_STRIDE}")
    a("v_add_u32 v5, s73, v5")
    a(f"ds_write_b32 v5, v{ACC} offset:{L_AP}")
    a(f"ds_write_b32 v5, v{ACC+4} offset:{L_AP+16}")
    a("s_lshl_b32 s73, s64, 2")
    a("v_mov_b32 v6, s73")
    a(f"ds_write_b32 v6, v124 offset:{L_LW}")
    a("s_waitcnt lgkmcnt(0)")
    a("s_barrier")
    a("v_and_b32 v5, 7, v2")
    a(f"v_mul_u32_u24 v5, {AP_STRIDE}, v5")
    a("v_lshrrev_b32 v6, 3, v2")
    a("v_lshl_add_u32 v5, v6, 2, v5")
    a("s_lshl_b32 s73, s64, 5")
    a("v_add_u32 v5, s73, v5")
    a(f"ds_read_b32 v6, v5 offset:{L_AP}")
    a(f"ds_read_b32 v7, v5 offset:{L_AP + 8*AP_STRIDE}")
    a("s_waitcnt lgkmcnt(0)")
    a("v_add_f32 v16, v6, v7")
    a("v_add_f32_dpp v16, v16, v16 quad_perm:[1,0,3,2] row_mask:0xf bank_mask:0xf")
    a("v_add_f32_dpp v16, v16, v16 quad_perm:[2,3,0,1] row_mask:0xf bank_mask:0xf")
    a("v_add_f32_dpp v16, v16, v16 row_half_mirror row_mask:0xf bank_mask:0xf")
    for r in range(8):
        a(f"v_readlane_b32 s{88+r}, v16, {8*r}")
    a.wait_vm("wo")
    for r in range(8):
        w = wo_slot[r]
        for q in range(4):
            a(f"v_lshlrev_b32 v{5+2*q}, 16, v{w+q}")
            a(f"v_and_b32 v{6+2*q}, 0xffff0000, v{w+q}")
        for q in range(8):
            if r == 0:
                a(f"v_mul_f32 v{ACC+q}, s{88+r}, v{5+q}")
            else:
                a(f"v_fmac_f32 v{ACC+q}, s{88+r}, v{5+q}")
    a("s_mul_i32 s73, s64, 2304")
    a(f"s_add_u32 s73, s73, {L_YP}")
    a("v_lshlrev_b32 v17, 5, v2")
    a("v_add_u32 v17, s73, v17")
    a(f"ds_write_b128 v17, v[{ACC}:{ACC+3}]")
    a(f"ds_write_b128 v17, v[{ACC+4}:{ACC+7}] offset:16")
    w = wo_slot[8]
    T = 20
    for q in range(4):
        a(f"v_lshlrev_b32 v5, 16, v{w+q}")
        a(f"v_and_b32 v6, 0xffff0000, v{w+q}")
        a(f"v_mul_f32 v{T+2*q}, v16, v5")
        a(f"v_mul_f32 v{T+2*q+1}, v16, v6")
    rscatter4(a, [T, T + 1, T + 2, T + 3])
    rscatter4(a, [T + 4, T + 5, T + 6, T + 7])
    a(f"v_add_f32_dpp v{T}, v{T}, v{T} row_ror:8 row_mask:0xf bank_mask:0xf")
    a(f"v_add_f32_dpp v{T+4}, v{T+4}, v{T+4} row_ror:8 row_mask:0xf bank_mask:0xf")
    a("v_and_b32 v5, 7, v4")
    a("v_lshl_add_u32 v5, v5, 3, v15")
    a("v_lshlrev_b32 v5, 2, v5")
    a("v_add_u32 v5, s73, v5")
    a(f"ds_write_b32 v5, v{T} offset:2048")
    a(f"ds_write_b32 v5, v{T+4} offset:2064")
    a("s_waitcnt lgkmcnt(0)")
    a("s_barrier")
    a("s_cmp_ge_u32 s64, 9")
    a("s_cbranch_scc1 L_k1_fin2")
    a("v_lshlrev_b32 v5, 2, v0")
    a(f"v_add_u32 v6, {L_FY}, v5")
    for w in range(16):
        a(f"ds_read_b32 v{16+w}, v5 offset:{L_YP + 2304*w}")
    for w in range(9):
        a(f"ds_read_b32 v{32+w}, v6 offset:{2304*w}")
    a("v_lshrrev_b32 v7, 4, v0")
    a("v_lshlrev_b32 v7, 15, v7")
    a("v_and_b32 v8, 15, v0")
    a("v_lshl_add_u32 v7, v8, 2, v7")
    a("s_lshl_b32 s73, s65, 6")
    a("s_add_u32 s74, s73, 16384")
    a("s_waitcnt lgkmcnt(0)")
    a("v_add_f32 v9, v16, v17")
    for w in range(2, 16):
        a(f"v_add_f32 v9, v9, v{16+w}")
    a("v_add_f32 v10, v32, v33")
    for w in range(2, 9):
        a(f"v_add_f32 v10, v10, v{32+w}")
    a("buffer_store_dword v9, v7, s[60:63], s73 offen")
    a("buffer_store_dword v10, v7, s[60:63], s74 offen")
    a("s_branch L_k1_end")
    a.label("L_k1_fin2")
    a("s_cmp_lg_u32 s64, 9")
    a("s_cbranch_scc1 L_k1_end")
    a("v_mov_b32 v6, 0")
    a(f"ds_read_b128 v[16:19], v6 offset:{L_LW}")
    a(f"ds_read_b128 v[20:23], v6 offset:{L_LW+16}")
    a(f"ds_read_b128 v[24:27], v6 offset:{L_LW+32}")
    a(f"ds_read_b128 v[28:31], v6 offset:{L_LW+48}")
    a("s_waitcnt lgkmcnt(0)")
    a("v_add_f32 v15, v16, v17")
    for w in range(2, 16):
        a(f"v_add_f32 v15, v15, v{16+w}")
    a("s_lshl_b32 s73, s65, 3")
    a(f"s_add_u32 s73, s73, {WS_ML}")
    a("s_mov_b64 exec, 1")
    a("buffer_store_dwordx2 v[14:15], v6, s[60:63], s73 offen")
    a.label("L_k1_end")
    a("s_endpgm")


def gen_k2(a):
    a.raw(f".globl {K2}\n.p2align 8\n.type {K2},@function\n{K2}:")
    a.hist = []
    a("s_cmp_ge_u32 s2, 36")
    a("s_cbranch_scc1 L_k2_end")
    a("s_load_dwordx2 s[4:5], s[0:1], 0")
    a("s_load_dwordx2 s[6:7], s[0:1], 72")
    a("s_load_dwordx2 s[8:9], s[0:1], 88")
    a("v_lshlrev_b32 v1, 4, v0")
    a("v_lshlrev_b32 v2, 3, v0")
    a("s_lshl_b32 s10, s2, 15")
    a("s_waitcnt lgkmcnt(0)")
    srd(a, 12, 4, 1152)
    srd(a, 16, 6, 1152)
    srd(a, 20, 8, WS_ML + 256 * 8)
    a(f"s_mov_b32 s11, {WS_ML}")
    a("buffer_load_dwordx2 v[4:5], v2, s[20:23], s11 offen")
    a.tag("ml")
    for i in range(8):
        a(f"buffer_load_dwordx4 v[{16+4*i}:{19+4*i}], v1, s[20:23], s10 offen")
        a.tag(f"c{i}")
        if i < 7:
            a("s_add_u32 s10, s10, 4096")
    a("v_and_b32 v3, 15, v0")
    a("v_lshlrev_b32 v3, 1, v3")
    a("s_lshl_b32 s11, s2, 5")
    a("buffer_load_ushort v60, v3, s[12:15], s11 offen")
    a.tag("x")
    a.wait_vm("ml")
    a("v_mov_b32 v6, v4")
    a("v_max_f32_dpp v6, v6, v6 quad_perm:[1,0,3,2] row_mask:0xf bank_mask:0xf")
    a("v_max_f32_dpp v6, v6, v6 quad_perm:[2,3,0,1] row_mask:0xf bank_mask:0xf")
    a("v_max_f32_dpp v6, v6, v6 row_half_mirror row_mask:0xf bank_mask:0xf")
    a("v_sub_f32 v6, v4, v6")
    a(f"v_mul_f32 v6, 0x{LOG2E:08x}, v6")
    a("v_exp_f32 v6, v6")
    a("v_mul_f32 v7, v6, v5")
    a("v_add_f32_dpp v7, v7, v7 quad_perm:[1,0,3,2] row_mask:0xf bank_mask:0xf")
    a("v_add_f32_dpp v7, v7, v7 quad_perm:[2,3,0,1] row_mask:0xf bank_mask:0xf")
    a("v_add_f32_dpp v7, v7, v7 row_half_mirror row_mask:0xf bank_mask:0xf")
    a("v_rcp_f32 v8, v7")
    a("v_mul_f32 v9, v6, v8")
    a("v_fma_f32 v10, -v9, v7, v6")
    a("v_fma_f32 v9, v10, v8, v9")
    a("v_lshlrev_b32 v10, 2, v0")
    a("ds_write_b32 v10, v9")
    a("s_waitcnt lgkmcnt(0)")
    a("s_barrier")
    a("v_lshrrev_b32 v10, 2, v0")
    a("v_lshlrev_b32 v10, 2, v10")
    for i in range(4):
        a(f"ds_read_b32 v{12+i}, v10 offset:{256*i}")
    a("s_waitcnt lgkmcnt(0)")
    A, B = 48, 52
    for i in range(8):
        a.wait_vm(f"c{i}")
        for q in range(4):
            c = 16 + 4 * i + q
            if i == 0:
                a(f"v_mul_f32 v{A+q}, v12, v{c}")
            elif i < 4:
                a(f"v_fmac_f32 v{A+q}, v{12+i}, v{c}")
            elif i == 4:
                a(f"v_mov_b32 v{B+q}, v{c}")
            else:
                a(f"v_add_f32 v{B+q}, v{B+q}, v{c}")
    for rr in (4, 8):
        for q in range(8):
            a(f"v_add_f32_dpp v{A+q}, v{A+q}, v{A+q} row_ror:{rr} row_mask:0xf bank_mask:0xf")
    a("v_lshrrev_b32 v10, 4, v0")
    a("v_lshlrev_b32 v10, 7, v10")
    a("v_and_b32 v11, 3, v0")
    a("v_lshl_add_u32 v10, v11, 5, v10")
    a(f"ds_write_b128 v10, v[{A}:{A+3}] offset:1024")
    a(f"ds_write_b128 v10, v[{B}:{B+3}] offset:1040")
    a("s_waitcnt lgkmcnt(0)")
    a("s_barrier")
    a("v_readfirstlane_b32 s11, v0")
    a("s_cmp_ge_u32 s11, 64")
    a("s_cbranch_scc1 L_k2_end")
    a("v_and_b32 v11, 15, v0")
    a("v_lshrrev_b32 v10, 2, v11")
    a("v_lshlrev_b32 v10, 5, v10")
    a("v_and_b32 v12, 3, v11")
    a("v_lshl_add_u32 v10, v12, 2, v10")
    for r in range(16):
        a(f"ds_read_b32 v{16+r}, v10 offset:{1024 + 128*r}")
    for r in range(16):
        a(f"ds_read_b32 v{32+r}, v10 offset:{1040 + 128*r}")
    a("s_waitcnt lgkmcnt(0)")
    a("v_add_f32 v4, v16, v17")
    a("v_add_f32 v5, v32, v33")
    for r in range(2, 16):
        a(f"v_add_f32 v4, v4, v{16+r}")
        a(f"v_add_f32 v5, v5, v{32+r}")
    bf16r(a, 4)
    bf16r(a, 5)
    a.wait_vm("x")
    a("v_lshlrev_b32 v60, 16, v60")
    a("v_add_f32 v4, v60, v4")
    bf16r(a, 4)
    a("v_add_f32 v4, v4, v5")
    a("v_cvt_pk_bf16_f32 v4, v4, v4")
    a("s_lshl_b32 s11, s2, 5")
    a("s_mov_b64 exec, 0xffff")
    a("buffer_store_short v4, v3, s[16:19], s11 offen")
    a.label("L_k2_end")
    a("s_endpgm")


def main():
    a = Asm()
    hdr = open(f"cdna_kernels/{NAME}.s.ref").read().split("\n")
    for line in hdr:
        if line.startswith(";") and "@launch" not in line and "Override" not in line and "grid=ceil" not in line:
            a.raw(line)
    a.raw(f"; @launch kernel={K1} grid=(256,1,1) block=(1024,1,1) lds={L_TOTAL}")
    a.raw(f"; @launch kernel={K2} grid=(36,1,1) block=(256,1,1) lds=4096")
    a.raw('.amdgcn_target "amdgcn-amd-amdhsa--gfx950"')
    a.raw(".text")
    gen_k1(a)
    gen_k2(a)
    a.raw('.section .rodata,"a"')
    for name, vg in ((K1, 128), (K2, 64)):
        a.raw(".p2align 6")
        a.raw(f".amdhsa_kernel {name}")
        a.raw(f"  .amdhsa_next_free_vgpr {vg}")
        a.raw("  .amdhsa_next_free_sgpr 102")
        a.raw(f"  .amdhsa_accum_offset {vg}")
        a.raw("  .amdhsa_group_segment_fixed_size 0")
        a.raw("  .amdhsa_kernarg_size 96")
        a.raw("  .amdhsa_user_sgpr_count 2")
        a.raw("  .amdhsa_user_sgpr_kernarg_segment_ptr 1")
        a.raw("  .amdhsa_system_sgpr_workgroup_id_x 1")
        a.raw(".end_amdhsa_kernel")
    out = sys.argv[1] if len(sys.argv) > 1 and not sys.argv[1].startswith("--") else f"cdna_kernels/{NAME}.s"
    open(out, "w").write(a.text())
    print("wrote", out, "nops inserted:", a.nops_inserted, "lines:", len(a.lines))


main()
```
